```python
import torch

def _softmax(x, axis=-1):
    return torch.softmax(x, dim=axis)
def _gelu(x):
    return torch.nn.functional.gelu(x, approximate="tanh")
def _silu(x):
    return torch.nn.functional.silu(x)
def _sigmoid(x):
    return torch.sigmoid(x)
def _layernorm(x, axis=-1, eps=1e-5):
    m = x.mean(dim=axis, keepdim=True)
    v = x.var(dim=axis, keepdim=True, unbiased=False)
    return (x - m) / torch.sqrt(v + eps)
def _scatter_add(tgt, idx, src, axis=0):
    return tgt.clone().index_add_(axis, idx, src)
def _segment_sum(src, seg, n):
    out = torch.zeros((n,) + src.shape[1:], dtype=src.dtype)
    return out.index_add_(0, seg, src)
def _pad(x, pw):
    flat = tuple(v for pair in reversed(pw) for v in pair)
    return torch.nn.functional.pad(x, flat)

kernel_name = 'concat_heads__sliding_block__spectral_fnet__prompt'

def setup_inputs():

    _w = (lambda a: (lambda t: t.to(torch.bfloat16) if t.is_floating_point() else t)(torch.as_tensor(a)))
    def _A_setup():
        B, S, D = 1, 2048, 640
        return {
            "x": _w((lambda *s: torch.randn(*s, dtype=torch.bfloat16) * 0.2)(B, S, D)),
            "wqkv": _w((lambda *s: torch.randn(*s, dtype=torch.bfloat16) * 0.8)(D, 3 * D)),
            "wo": _w((lambda *s: torch.randn(*s, dtype=torch.bfloat16) * 0.2)(D, D)),
        }
    _A_in = _A_setup()

    def _B_setup():
        B, S, D = 1, 2048, 640
        ns = torch.arange(S)[:, None] * torch.arange(S)[None, :]
        nd = torch.arange(D)[:, None] * torch.arange(D)[None, :]
        Ws_re = torch.cos(-2.0 * torch.pi * ns / S).to(float)
        Ws_im = torch.sin(-2.0 * torch.pi * ns / S).to(float)
        Wd_re = torch.cos(-2.0 * torch.pi * nd / D).to(float)
        Wd_im = torch.sin(-2.0 * torch.pi * nd / D).to(float)
        return {
            "x": _w((lambda *s: torch.randn(*s, dtype=torch.bfloat16) * 0.05)(B, S, D)),
            "dft_seq_re": _w(Ws_re),
            "dft_seq_im": _w(Ws_im),
            "dft_hid_re": _w(Wd_re),
            "dft_hid_im": _w(Wd_im),
        }
    _B_in = _B_setup()

    return {
        "A_x": _A_in["x"],
        "A_wqkv": _A_in["wqkv"],
        "A_wo": _A_in["wo"],
        "B_x": _B_in["x"],
        "B_dft_seq_re": _B_in["dft_seq_re"],
        "B_dft_seq_im": _B_in["dft_seq_im"],
        "B_dft_hid_re": _B_in["dft_hid_re"],
        "B_dft_hid_im": _B_in["dft_hid_im"],
    }

def reference(A_x, A_wqkv, A_wo, B_x, B_dft_seq_re, B_dft_seq_im, B_dft_hid_re, B_dft_hid_im):
    def _A_ref(x, wqkv, wo):
        B, S, D = x.shape
        H = 32; Dh = D // H; W = 256
        qkv = (lambda x, *d: x.permute(*d))((x @ wqkv).reshape(B, S, 3, H, Dh), 2, 0, 3, 1, 4)
        q, k, v = qkv[0], qkv[1], qkv[2]
        scores = torch.einsum("bhqd,bhkd->bhqk", q, k) * (Dh ** -0.5)
        idx = torch.arange(S)
        mask = (idx[:, None] - idx[None, :] >= 0) & (idx[:, None] - idx[None, :] < W)
        scores = torch.where(mask[None, None], scores, -1e9)
        p = _softmax(scores, axis=-1)
        o = torch.einsum("bhqk,bhkd->bhqd", p, v)
        return (lambda x, *d: x.permute(*d))(o, 0, 2, 1, 3).reshape(B, S, D) @ wo

    def _B_ref(x, dft_seq_re, dft_seq_im, dft_hid_re, dft_hid_im):
        a = torch.einsum("bsd,ed->bse", x, dft_hid_re)
        b = torch.einsum("bsd,ed->bse", x, dft_hid_im)
        y = torch.einsum("ts,bse->bte", dft_seq_re, a) - torch.einsum("ts,bse->bte", dft_seq_im, b)
        return y

    a = _A_ref(A_x, A_wqkv, A_wo)
    b = _B_ref(B_x, B_dft_seq_re, B_dft_seq_im, B_dft_hid_re, B_dft_hid_im)
    return torch.concatenate([a, b], axis=-1)
```

```python
import re

class Asm:
    def __init__(self):
        self.lines = []
        self.uid = 0
    def __call__(self, s):
        for l in s.split('\n'):
            l = l.strip()
            if l: self.lines.append(l)
    def label(self, base):
        self.uid += 1
        return f'{base}_{self.uid}'
    def text(self):
        out = []
        for l in self.lines:
            if l.endswith(':') or l.startswith('.') or l.startswith(';'): out.append(l)
            else: out.append('    ' + l)
        return '\n'.join(out) + '\n'

def vr(b, n=1): return f'v{b}' if n == 1 else f'v[{b}:{b+n-1}]'
def sr(b, n=1): return f's{b}' if n == 1 else f's[{b}:{b+n-1}]'

_REG = re.compile(r'^(-|\|)?(abs\()?([vsa])(\d+|\[(\d+):(\d+)\])\)?\|?$')
def regs(tok):
    tok = tok.strip()
    if tok in ('vcc',): return {('s', 106), ('s', 107)}
    if tok == 'vcc_lo': return {('s', 106)}
    if tok == 'vcc_hi': return {('s', 107)}
    if tok == 'exec': return {('s', 126), ('s', 127)}
    if tok == 'exec_lo': return {('s', 126)}
    if tok == 'exec_hi': return {('s', 127)}
    if tok == 'm0': return {('s', 124)}
    m = _REG.match(tok)
    if not m: return set()
    k = m.group(3)
    if m.group(5): return {(k, i) for i in range(int(m.group(5)), int(m.group(6)) + 1)}
    return {(k, int(m.group(4)))}

TRANS = ('v_exp_f32', 'v_log_f32', 'v_rcp_f32', 'v_rsq_f32', 'v_sqrt_f32', 'v_sin_f32', 'v_cos_f32', 'v_rcp_iflag_f32')
class I:
    def __init__(self, line):
        self.line = line
        line = line.split(';')[0].strip()
        p = line.split(None, 1)
        self.op = re.sub(r'_(e32|e64)$', '', p[0])
        rest = p[1] if len(p) > 1 else ''
        toks = [t.strip() for t in rest.split(',')] if rest else []
        mods = ''
        if toks:
            q = toks[-1].split(None, 1)
            toks[-1] = q[0]
            mods = q[1] if len(q) > 1 else ''
        self.toks, self.mods = toks, mods
        op = self.op
        self.w, self.r = set(), set()
        self.kind = 'other'
        R = lambda i: regs(toks[i]) if i < len(toks) else set()
        allr = lambda a: set().union(*[regs(t) for t in toks[a:]]) if toks[a:] else set()
        if op.startswith('v_mfma'):
            self.kind = 'mfma'; self.w = R(0); self.a = R(1); self.b = R(2); self.c = R(3); self.r = self.a | self.b | self.c
            self.passes = 8 if '32x32' in op else 4
        elif op.startswith('v_cmp'):
            self.kind = 'valu'; self.w = R(0); self.r = allr(1)
            if op.startswith('v_cmpx'): self.w |= regs('exec')
        elif op.startswith('v_permlane'):
            self.kind = 'valu'; self.w = R(0) | R(1); self.r = R(0) | R(1)
        elif op in ('v_readfirstlane_b32', 'v_readlane_b32'):
            self.kind = 'valu'; self.w = R(0); self.r = allr(1)
        elif op in ('v_add_co_u32', 'v_sub_co_u32', 'v_addc_co_u32', 'v_subb_co_u32'):
            self.kind = 'valu'; self.w = R(0) | R(1); self.r = allr(2)
        elif op.startswith('v_'):
            self.kind = 'valu'; self.w = R(0); self.r = allr(1)
            if op.startswith(('v_fmac', 'v_dot2c', 'v_writelane', 'v_pk_fmac')) or 'UNUSED_PRESERVE' in mods: self.r |= R(0)
            if op == 'v_nop': self.w = set()
        elif op.startswith('ds_'):
            self.kind = 'ds'
            if op.startswith(('ds_read', 'ds_bpermute', 'ds_permute', 'ds_swizzle')) or '_rtn' in op:
                self.w = R(0); self.r = allr(1)
            else: self.r = allr(0)
        elif op.startswith('buffer_'):
            self.kind = 'vm'
            if op in ('buffer_wbl2', 'buffer_inv'): pass
            elif op.startswith('buffer_load') and 'lds' in mods.split():
                self.r = allr(0) | regs('m0'); self.dma = True
            elif op.startswith('buffer_load'): self.w = R(0); self.r = allr(1)
            elif op.startswith('buffer_atomic'):
                self.r = allr(0)
                if 'sc0' in mods.split(): self.w = R(0)
            else: self.r = allr(0); self.data = R(0)
        elif op.startswith('global_'):
            self.kind = 'vm'
            if op.startswith('global_load'): self.w = R(0); self.r = allr(1)
            else: self.r = allr(0); self.data = R(1)
        elif op.startswith(('s_load', 's_memtime', 's_memrealtime', 's_buffer_load')):
            self.kind = 'smem'; self.w = R(0); self.r = allr(1)
        elif op.startswith('s_'):
            self.kind = 'salu'
            if op.startswith(('s_cmp', 's_cbranch', 's_branch', 's_waitcnt', 's_nop', 's_barrier', 's_endpgm', 's_sleep', 's_setprio', 's_bitcmp', 's_setpc')):
                self.r = allr(0)
                if op in ('s_cbranch_vccz', 's_cbranch_vccnz'): self.r |= regs('vcc')
            else:
                self.w = R(0); self.r = allr(1)
                if 'saveexec' in op: self.w |= regs('exec'); self.r |= regs('exec')
                if op in ('s_addk_i32', 's_mulk_i32'): self.r |= R(0)
        self.states = 1
        if op == 's_nop': self.states = int(toks[0], 0) + 1

def check(lines, name='', verbose=True):
    errs = []
    hist = []
    t = 0
    vmq, lgq = [], []
    def need(i, cond, n, why):
        for (p, tp) in reversed(hist):
            d = t - tp - p.states
            if d >= 20: break
            if d < n and cond(p): errs.append(f'{name}: hazard [{why}] need {n} have {d}: "{p.line}" -> "{i.line}"'); break
    for ln in lines:
        if ln.startswith('; @reset'):
            hist = []; vmq = []; lgq = []; continue
        if ln.endswith(':') or ln.startswith('.') or ln.startswith(';'): continue
        i = I(ln)
        V = lambda s: {x for x in s if x[0] in 'va'}
        S = lambda s: {x for x in s if x[0] == 's'}
        if i.kind == 'mfma':
            need(i, lambda p: p.kind == 'valu' and V(p.w) & i.r, 2, 'valu->mfma')
            need(i, lambda p: p.kind == 'valu' and regs('exec') & p.w, 4, 'valu exec->mfma')
            for ps, n in ((8, 12), (4, 8)):
                need(i, lambda p: p.kind == 'mfma' and p.passes == ps and p.w & (i.a | i.b), n, 'mfma D->A/B')
            for ps, n in ((8, 10), (4, 6)):
                need(i, lambda p: p.kind == 'mfma' and p.passes == ps and p.w & i.c and not (p.w == i.c and p.passes == i.passes), n, 'mfma D->C partial')
                need(i, lambda p: p.kind == 'mfma' and p.passes == ps and p.w & i.w and not (p.w == i.c and p.passes == i.passes) , n, 'mfma D->D waw')
        if i.kind in ('valu', 'ds', 'vm'):
            for ps, n in ((8, 12), (4, 8)):
                need(i, lambda p: p.kind == 'mfma' and p.passes == ps and p.w & (i.r | i.w), n, 'mfma D->valu/mem')
        if i.kind == 'valu':
            for ps, n in ((8, 7), (4, 3)):
                need(i, lambda p: p.kind == 'mfma' and p.passes == ps and p.c & i.w, n, 'mfma C WAR')
            if i.op not in TRANS: need(i, lambda p: p.op in TRANS and p.w & i.r, 1, 'trans->valu')
            need(i, lambda p: p.kind == 'valu' and S(p.w) & S(i.r), 2, 'valu sgpr->valu')
            need(i, lambda p: p.kind == 'vm' and len(getattr(p, 'data', ())) >= 3 and p.data & i.w, 2, 'store data WAR')
            if i.op.startswith('v_permlane'):
                need(i, lambda p: p.kind == 'valu' and V(p.w) & i.r, 2, 'valu->permlane')
                need(i, lambda p: p.kind == 'valu' and regs('exec') & p.w, 4, 'exec->permlane')
            if i.op in ('v_readfirstlane_b32', 'v_readlane_b32'):
                need(i, lambda p: p.kind == 'valu' and V(p.w) & i.r, 1, 'valu->readlane')
                need(i, lambda p: p.kind == 'valu' and regs('exec') & p.w, 4, 'exec->readlane')
            if 'dpp' in i.op or 'row_' in i.mods or 'quad_perm' in i.mods:
                need(i, lambda p: p.kind == 'valu' and V(p.w) & i.r, 2, 'valu->dpp')
        if i.kind in ('ds', 'vm'):
            need(i, lambda p: p.op in TRANS and p.w & i.r, 1, 'trans->mem')
            need(i, lambda p: p.kind == 'vm' and len(getattr(p, 'data', ())) >= 3 and p.data & i.w, 1, 'store data WAR(load)')
        if i.kind == 'vm':
            need(i, lambda p: p.kind == 'valu' and S(p.w) & S(i.r), 5, 'valu sgpr->vmem')
            if getattr(i, 'dma', False): need(i, lambda p: p.kind == 'salu' and regs('m0') & p.w, 1, 'm0->dma')
        if i.op == 's_waitcnt':
            full = ln.split(';')[0]
            m = re.search(r'vmcnt\((\d+)\)', full)
            if m:
                n = int(m.group(1)); vmq = vmq[len(vmq)-n:] if n and len(vmq) > n else ([] if n == 0 else vmq)
            m = re.search(r'lgkmcnt\((\d+)\)', full)
            if m:
                n = int(m.group(1))
                if n and any(p.kind == 'smem' for p in lgq): errs.append(f'{name}: counted lgkmcnt with smem outstanding: {ln}')
                lgq = lgq[len(lgq)-n:] if n and len(lgq) > n else ([] if n == 0 else lgq)
        else:
            for q in (vmq, lgq):
                for p in q:
                    if p.w & (i.r | i.w): errs.append(f'{name}: missing wait: "{p.line}" -> "{i.line}"')
        if i.kind == 'vm':
            vmq.append(i)
            if len(vmq) > 63: pass
        if i.kind in ('ds', 'smem'): lgq.append(i)
        hist.append((i, t)); t += i.states
        if len(hist) > 64: hist = hist[-40:]
    if verbose:
        for e in errs[:60]: print(e)
        if errs: print(f'{name}: {len(errs)} problems')
    return errs
```

```python
from asmlib import *
import struct, math

NAME = 'concat_heads__sliding_block__spectral_fnet__prompt'
WS_QKV = 0x0
WS_O   = 0x800000
WS_G   = 0xB00000
WS_END = 0x1000000
PL = 32768
def f2u(x): return struct.unpack('<I', struct.pack('<f', x))[0]
QSCALE = f2u(20**-0.5 * 1.4426950408889634)

S_AX, S_WQKV, S_WO, S_BX, S_SRE, S_SIM, S_HRE, S_HIM, S_OUT, S_DBG, S_WS = 4, 6, 8, 10, 12, 14, 16, 18, 20, 22, 24
R_A, R_B, R_WS, R_OUT = 28, 32, 36, 40
S_J, S_IDX, S_W = 44, 45, 46
V_LANE = 1

def srd(a, r, base, size, add=0):
    if add:
        a(f's_add_u32 s{r}, s{base}, {add}\ns_addc_u32 s{r+1}, s{base+1}, 0')
    else:
        a(f's_mov_b32 s{r}, s{base}\ns_mov_b32 s{r+1}, s{base+1}')
    a(f's_mov_b32 s{r+2}, {size}\ns_mov_b32 s{r+3}, 0x20000')

def prologue(a, lend):
    a(f'''s_cmp_ge_u32 s2, 256
    s_cbranch_scc1 {lend}
    s_load_dwordx16 s[4:19], s[0:1], 0
    s_load_dwordx4 s[20:23], s[0:1], 64
    s_load_dwordx2 s[24:25], s[0:1], 80
    v_lshrrev_b32 v2, 6, v0
    v_and_b32 v{V_LANE}, 63, v0
    v_readfirstlane_b32 s{S_W}, v2
    s_and_b32 s{S_J}, s2, 7
    s_lshr_b32 s{S_IDX}, s2, 3''')

def stamp(a, n, cfg, wait=False):
    if cfg.get('stamps'):
        a(f's_memrealtime s[{60+2*n}:{61+2*n}]')
        if wait: a('s_waitcnt lgkmcnt(0)')

def k1_body(a, cfg, lend):
    NS = cfg.get('NS', 4)
    stf = cfg.get('qkv_st', '')
    gtf = cfg.get('g_st', '')
    xf = cfg.get('x_ld', ''); wf = cfg.get('w_ld', ''); bxf = cfg.get('bx_ld', '')
    l_step1, l_comp = a.label('L_step1'), a.label('L_comp')
    sRT, sCT, sT0, sT1, sM = 47, 48, 49, 50, 51
    a(f'''s_cmp_ge_u32 s{S_IDX}, 30
    s_cbranch_scc1 {l_step1}
    s_cmp_ge_u32 s{S_IDX}, 15
    s_cselect_b32 s{sT0}, 1, 0
    s_cselect_b32 s{sT1}, 15, 0
    s_lshl_b32 s{sRT}, s{S_J}, 1
    s_add_u32 s{sRT}, s{sRT}, s{sT0}
    s_sub_u32 s{sCT}, s{S_IDX}, s{sT1}
    s_cmp_lt_u32 s{S_W}, 4
    s_cbranch_scc1 {l_comp}''')
    vXa, vXb, vWo, t0, t1 = 2, 3, 4, 5, 6
    a(f'''s_sub_u32 s{sT0}, s{S_W}, 4
    s_lshl_b32 s{sM}, s{sT0}, 12
    v_lshrrev_b32 v{t0}, 3, v{V_LANE}
    s_lshl_b32 s{sT1}, s{sRT}, 2
    s_add_u32 s{sT1}, s{sT1}, s{sT0}
    s_mul_i32 s{sT1}, s{sT1}, {32*1280}
    v_mul_u32_u24 v{t0}, 1280, v{t0}
    v_add_u32 v{t0}, s{sT1}, v{t0}
    v_lshrrev_b32 v{t1}, 4, v{V_LANE}
    v_and_b32 v{vXa}, 7, v{V_LANE}
    v_xor_b32 v{vXa}, v{vXa}, v{t1}
    v_xor_b32 v{vXb}, 4, v{vXa}
    v_lshl_add_u32 v{vXa}, v{vXa}, 4, v{t0}
    v_lshl_add_u32 v{vXb}, v{vXb}, 4, v{t0}
    s_mul_i32 s{sT1}, s{sT0}, {16*3840}
    s_lshl_b32 s{sT0}, s{sCT}, 8
    s_add_u32 s{sT1}, s{sT1}, s{sT0}
    v_mul_u32_u24 v{t0}, 3840, v{t1}
    v_add_u32 v{t0}, s{sT1}, v{t0}
    v_lshlrev_b32 v{t1}, 2, v{t1}
    v_and_b32 v{vWo}, 15, v{V_LANE}
    v_xor_b32 v{vWo}, v{vWo}, v{t1}
    v_lshl_add_u32 v{vWo}, v{vWo}, 4, v{t0}
    s_waitcnt lgkmcnt(0)''')
    srd(a, R_A, S_AX, 2048*1280); srd(a, R_B, S_WQKV, 640*3840)
    def issue(k):
        slot = k % NS
        if 'nodma' in cfg.get('exp', ''): return
        for i in range(4):
            a(f's_add_u32 m0, s{sM}, {slot*32768 + i*1024}\ns_mov_b32 s{sT0}, {i*8*1280 + k*128}')
            a(f'buffer_load_dwordx4 v{vXb if i & 1 else vXa}, s[{R_A}:{R_A+3}], s{sT0} offen {xf} lds')
            a(f's_add_u32 m0, s{sM}, {slot*32768 + 16384 + i*1024}\ns_mov_b32 s{sT0}, {(k*64 + i*4)*3840}')
            a(f'buffer_load_dwordx4 v{vWo}, s[{R_B}:{R_B+3}], s{sT0} offen {wf} lds')
    for k in range(NS): issue(k)
    issued = NS
    for k in range(10):
        a(f's_waitcnt vmcnt({8*(issued-1-k)})\ns_barrier')
        if k >= 1 and issued < 10: issue(issued); issued += 1
    a(f's_branch {lend}')
    a('; @reset'); a(f'{l_comp}:')
    ACC = 64
    FR = 32
    nset = (NS + 1)//2
    vB = [[8 + 6*s + kk for kk in range(4)] for s in range(nset)]
    vA = [[12 + 6*s + t for t in range(2)] for s in range(nset)]
    sWM, sWN = 52, 53
    t0, t1, t2, t3, t4 = 2, 3, 4, 5, 6
    a(f'''s_and_b32 s{sWM}, s{S_W}, 1
    s_lshr_b32 s{sWN}, s{S_W}, 1
    v_and_b32 v{t0}, 31, v{V_LANE}
    v_lshrrev_b32 v{t1}, 5, v{V_LANE}
    v_bfe_u32 v{t2}, v{V_LANE}, 1, 3
    v_xor_b32 v{t2}, v{t2}, v{t1}
    s_lshl_b32 s{sT0}, s{sWN}, 13
    v_lshl_add_u32 v{t3}, v{t0}, 7, s{sT0}''')
    for kk in range(4):
        a(f'v_xor_b32 v{t4}, {2*kk}, v{t2}\nv_lshl_add_u32 v{vB[0][kk]}, v{t4}, 4, v{t3}')
    a(f'''v_bfe_u32 v{t2}, v{V_LANE}, 2, 2
    v_lshl_add_u32 v{t3}, v{t1}, 3, v{t2}
    v_lshlrev_b32 v{t3}, 8, v{t3}
    v_bfe_u32 v{t4}, v{V_LANE}, 4, 1
    v_lshl_add_u32 v{t3}, v{t4}, 5, v{t3}
    v_and_b32 v{t4}, 3, v{V_LANE}
    v_lshl_add_u32 v{t3}, v{t4}, 3, v{t3}
    v_add_u32 v{t3}, 16384, v{t3}
    s_lshl_b32 s{sT0}, s{sWM}, 1''')
    for t in range(2):
        a(f's_add_u32 s{sT1}, s{sT0}, {t}\nv_xor_b32 v{t4}, s{sT1}, v{t2}\nv_lshl_add_u32 v{vA[0][t]}, v{t4}, 6, v{t3}')
    for s in range(1, nset):
        for r0, r1 in zip(vB[0] + vA[0], vB[s] + vA[s]): a(f'v_add_u32 v{r1}, {65536*s}, v{r0}')
    vO = 7
    a(f'''s_lshl_b32 s{sT0}, s{sCT}, 1
    s_add_u32 s{sT0}, s{sT0}, s{sWM}
    s_lshl_b32 s{sT0}, s{sT0}, 18
    s_lshl_b32 s{sT1}, s{sRT}, 1
    s_add_u32 s{sT1}, s{sT1}, s{sWN}
    s_lshl_b32 s{sT1}, s{sT1}, 10
    s_add_u32 s{sT0}, s{sT0}, s{sT1}
    v_lshl_add_u32 v{vO}, v{t0}, 4, s{sT0}
    v_lshl_add_u32 v{vO}, v{t1}, 15, v{vO}
    s_waitcnt lgkmcnt(0)''')
    srd(a, R_WS, S_WS, WS_END)
    def reads(step):
        k, kk = divmod(step, 4)
        slot = k % NS; s = slot // 2; so = (slot & 1)*32768
        f = FR + 16*(step & 1)
        L = []
        for t in range(2):
            L.append(f'ds_read_b128 {vr(f+8+4*t, 4)}, v{vB[s][kk]} offset:{so + t*4096}')
        for t in range(2):
            for u in range(2):
                L.append(f'ds_read_b64_tr_b16 {vr(f+4*t+2*u, 2)}, v{vA[s][t]} offset:{so + kk*4096 + u*1024}')
        return [L[0], L[2], L[3], L[4], L[5], L[1]]
    def mfmas(step):
        f = FR + 16*(step & 1)
        L = []
        for (tp, t) in ((0, 0), (1, 0), (0, 1), (1, 1)):
            acc = ACC + 16*(2*tp + t)
            c = '0' if step == 0 else vr(acc, 16)
            L.append(f'v_mfma_f32_32x32x16_bf16 {vr(acc, 16)}, {vr(f+4*tp, 4)}, {vr(f+8+4*t, 4)}, {c}')
        return L
    a('s_barrier')
    stamp(a, 1, cfg)
    for l in reads(0): a(l)
    for step in range(40):
        a('s_waitcnt lgkmcnt(0)')
        M = mfmas(step)
        if step == 39:
            for l in M: a(l)
            break
        if step % 4 == 3: a('s_barrier')
        R = reads(step + 1)
        x = cfg.get('exp', '')
        if 'noread' in x: R = ['s_nop 0']*6
        if 'halfread' in x: R = R[:3] + ['s_nop 0']*3
        if 'nomfma' in x: M = ['s_nop 0']*4
        if 'early' in x:
            for l in R + M: a(l)
            continue
        a(M[0]); a(R[0]); a(R[1]); a(R[2]); a(M[1]); a(R[3]); a(R[4]); a(R[5]); a(M[2]); a(M[3])
    stamp(a, 2, cfg)
    lns = a.label('L_noscale')
    a(f's_nop 7\ns_nop 7\ns_cmp_ge_u32 s{sCT}, 5\ns_cbranch_scc1 {lns}')
    a(f'v_mov_b32 v{t0}, {QSCALE}')
    for r in range(64): a(f'v_mul_f32 v{ACC+r}, v{t0}, v{ACC+r}')
    a(f'{lns}:')
    P = 32
    n = 0
    for tp in range(2):
        for t in range(2):
            acc = ACC + 16*(2*tp + t)
            for p in range(2):
                d = P + 4*(n % 8); n += 1
                for x in range(4): a(f'v_cvt_pk_bf16_f32 v{d+x}, v{acc+8*p+2*x}, v{acc+8*p+2*x+1}')
                a(f's_mov_b32 s{sT0}, {WS_QKV + (4*tp + 2*p)*PL}\ns_nop 0')
                a(f'v_permlane32_swap_b32 v{d}, v{d+2}\nv_permlane32_swap_b32 v{d+1}, v{d+3}')
                a(f'buffer_store_dwordx4 {vr(d, 4)}, v{vO}, s[{R_WS}:{R_WS+3}], s{sT0} offen offset:{t*512} {stf}')
    if cfg.get('stamps'):
        a('s_waitcnt vmcnt(0)'); stamp(a, 3, cfg)
        a(f's_branch {cfg["lstamp"]}')
    a(f's_branch {lend}')
    a('; @reset'); a(f'{l_step1}:')
    step1(a, cfg, lend)

def step1(a, cfg, lend):
    gtf = cfg.get('g_st', ''); bxf = cfg.get('bx_ld', '')
    sN, sSQ, sDT, sT0, sT1, sM = 47, 48, 49, 50, 51, 52
    a(f'''s_cmp_ge_u32 s{S_W}, 5
    s_cbranch_scc1 {lend}
    s_and_b32 s{sT0}, s{S_IDX}, 1
    s_mov_b32 s{sSQ}, s{S_J}
    s_mul_i32 s{sDT}, s{sT0}, 5
    s_add_u32 s{sDT}, s{sDT}, s{S_W}
    s_mul_i32 s{sM}, s{S_W}, 24576''')
    vX, t0, t1, t2, t3 = 2, 3, 4, 5, 6
    a(f'''v_lshrrev_b32 v{t0}, 3, v{V_LANE}
    v_mul_u32_u24 v{t0}, {32*1280}, v{t0}
    v_bfe_u32 v{t1}, v{V_LANE}, 2, 1
    v_bfe_u32 v{t2}, v{V_LANE}, 4, 1
    v_xor_b32 v{t1}, v{t1}, v{t2}
    v_mul_u32_u24 v{t1}, 640, v{t1}
    v_and_b32 v{t2}, 3, v{V_LANE}
    v_lshl_add_u32 v{t1}, v{t2}, 4, v{t1}
    s_mul_i32 s{sT0}, s{sSQ}, {4*1280}
    s_lshl_b32 s{sT1}, s{sDT}, 6
    s_add_u32 s{sT0}, s{sT0}, s{sT1}
    v_add3_u32 v{vX}, v{t0}, v{t1}, s{sT0}
    s_waitcnt lgkmcnt(0)''')
    srd(a, R_A, S_BX, 2048*1280); srd(a, R_WS, S_WS, WS_END)
    def issue(u):
        for i in range(8):
            a(f's_add_u32 m0, s{sM}, {(u % 3)*8192 + i*1024}\ns_mov_b32 s{sT0}, {i*8*32*1280 + u*1280}')
            a(f'buffer_load_dwordx4 v{vX}, s[{R_A}:{R_A+3}], s{sT0} offen {bxf} lds')
    for u in range(3): issue(u)
    vT = [7, 8]
    a(f'''v_lshrrev_b32 v{t0}, 5, v{V_LANE}
    v_bfe_u32 v{t1}, v{V_LANE}, 2, 2
    v_lshl_add_u32 v{t2}, v{t0}, 3, v{t1}
    v_lshlrev_b32 v{t2}, 7, v{t2}
    v_bfe_u32 v{t3}, v{V_LANE}, 4, 1
    v_lshl_add_u32 v{t2}, v{t3}, 5, v{t2}
    v_and_b32 v{t3}, 3, v{V_LANE}
    v_lshl_add_u32 v{t2}, v{t3}, 3, v{t2}
    v_add_u32 v{t2}, s{sM}, v{t2}
    v_lshrrev_b32 v{t1}, 1, v{t1}
    v_lshl_add_u32 v{vT[0]}, v{t1}, 6, v{t2}
    v_xor_b32 v{vT[1]}, 64, v{vT[0]}''')
    F = 16
    vc, vph, vang, vs = 9, 10, 11, 12
    a(f'''v_and_b32 v{t1}, 31, v{V_LANE}
    v_cvt_f32_u32 v{vc}, v{t1}
    v_lshlrev_b32 v{t0}, 3, v{t0}
    v_cvt_f32_u32 v{vs}, v{t0}
    v_mul_f32 v{vc}, {f2u(1/64)}, v{vc}''')
    for mt in range(2):
        if mt == 1:
            a(f'''v_cmp_eq_u32 s[54:55], 0, v{t1}
            v_mov_b32 v{vph}, {f2u(0.25)}
            v_mov_b32 v{t2}, 0.5
            v_cndmask_b32 v{vph}, v{vph}, 0, s[54:55]
            v_cndmask_b32 v{vc}, v{vc}, v{t2}, s[54:55]''')
        else: a(f'v_mov_b32 v{vph}, 0')
        a(f'v_fma_f32 v{vang}, v{vc}, v{vs}, v{vph}')
        for ks in range(4):
            for jp in range(4):
                s1 = 16*ks + 2*jp
                a(f'''v_mov_b32 v{t2}, {f2u(float(s1))}
                v_fma_f32 v{t3}, v{vc}, v{t2}, v{vang}
                v_add_f32 v{t2}, v{vc}, v{t3}
                v_cos_f32 v{t3}, v{t3}
                v_cos_f32 v{t2}, v{t2}
                s_nop 0
                v_cvt_pk_bf16_f32 v{F + 16*mt + 4*ks + jp}, v{t3}, v{t2}''')
    vO = 13
    a(f'''v_lshrrev_b32 v{t0}, 5, v{V_LANE}
    v_mul_u32_u24 v{t0}, {4*81920}, v{t0}
    s_mul_i32 s{sT0}, s{sSQ}, 10240
    s_lshl_b32 s{sT1}, s{sDT}, 9
    s_add_u32 s{sT0}, s{sT0}, s{sT1}
    v_lshl_add_u32 v{vO}, v{t1}, 4, v{t0}
    v_add_u32 v{vO}, s{sT0}, v{vO}''')
    BF = 48
    ACC = 64
    PK = 128
    for u in range(4):
        rem = min(2, 3 - u) if u < 3 else 0
        if u == 0: stamp(a, 4, cfg)
        a(f's_waitcnt vmcnt({8*({0: 2, 1: 2, 2: 1, 3: 0}[u])})')
        if u == 0: stamp(a, 5, cfg, True)
        def rd(ks):
            f = BF + 8*(ks & 1)
            for p in range(2):
                for uu in range(2):
                    a(f'ds_read_b64_tr_b16 {vr(f+4*p+2*uu, 2)}, v{vT[p]} offset:{(u % 3)*8192 + ks*2048 + uu*512}')
        rd(0)
        for ks in range(4):
            if ks < 3: rd(ks + 1); a('s_waitcnt lgkmcnt(4)')
            else:
                a('s_waitcnt lgkmcnt(0)')
                if u == 0: issue(3)
            f = BF + 8*(ks & 1)
            for p in range(2):
                for mt in range(2):
                    acc = ACC + 32*p + 16*mt
                    a(f'v_mfma_f32_32x32x16_bf16 {vr(acc, 16)}, {vr(F+16*mt+4*ks, 4)}, {vr(f+4*p, 4)}, {"0" if ks == 0 else vr(acc, 16)}')
        a('s_nop 7\ns_nop 7')
        for r in range(16):
            re_a, im_a, re_b, im_b = ACC + r, ACC + 16 + r, ACC + 32 + r, ACC + 48 + r
            a(f'''v_add_f32 v{t0}, v{re_a}, v{re_b}
            v_add_f32 v{t2}, v{im_a}, v{im_b}
            v_sub_f32 v{t3}, v{re_a}, v{re_b}
            v_sub_f32 v{vs}, v{im_a}, v{im_b}
            v_cvt_pk_bf16_f32 v{PK + 4*r + u}, v{t0}, v{t2}
            v_cvt_pk_bf16_f32 v{PK + 64 + 4*r + u}, v{t3}, v{vs}''')
    stamp(a, 6, cfg)
    for sg in range(2):
        for r in range(16):
            cl = 8*(r >> 2) + (r & 3)
            a(f's_mov_b32 s{sT0}, {WS_G + cl*81920 + sg*5120}')
            a(f'buffer_store_dwordx4 {vr(PK + 64*sg + 4*r, 4)}, v{vO}, s[{R_WS}:{R_WS+3}], s{sT0} offen {gtf}')
    if cfg.get('stamps'):
        a('s_waitcnt vmcnt(0)'); stamp(a, 7, cfg)
        a(f's_branch {cfg["lstamp"]}')
    a(f's_branch {lend}')
```

```python
from asmlib import *
from k1 import *

L_K, L_V, VP = 0, 24576, 8256
L_SYNC = 57600
L_Y = 57856
LDS = L_Y + 4*24576
BIAS = 44.0
R_DEAD = 40

def lds_arrive(a, vaddr, vtmp, off):
    a(f'''s_mov_b64 exec, 1
    v_mov_b32 v{vtmp}, 1
    ds_add_u32 v{vaddr}, v{vtmp} offset:{off}
    s_mov_b64 exec, -1''')
def lds_wait(a, vaddr, vtmp, off, target, stmp):
    l = a.label('L_lw')
    a(f'''{l}:
    ds_read_b32 v{vtmp}, v{vaddr} offset:{off}
    s_waitcnt lgkmcnt(0)
    v_readfirstlane_b32 s{stmp}, v{vtmp}
    s_cmp_lt_u32 s{stmp}, {target}
    s_cbranch_scc1 {l}''')

vKa, vKb, vV, vQo, vOo = 2, 3, 4, 5, 6
T0, T1, T2, T3 = 8, 9, 10, 11
Q1, Q2 = 12, 16
QN1, QN2 = 20, 24
KF = [28, 36, 44]
VF = [52, 60]
SB = [80, 96, 112]
PP, PF = 68, 128
OA = 144
MP = 160
vM = 168
SMASK = 64

def attn_setup(a, cfg):
    sT0, sT1, sOA, sOB, sHB = 47, 48, 49, 50, 51
    a(f'''s_mul_i32 s{sT0}, s{S_IDX}, 5
    s_lshr_b32 s{sT0}, s{sT0}, 1
    s_and_b32 s{sHB}, s{S_IDX}, 1
    s_add_u32 s{sOA}, s{sT0}, s{sHB}
    s_lshl_b32 s{sT1}, s{sHB}, 1
    s_sub_u32 s{sOB}, s{sT0}, s{sT1}
    s_add_u32 s{sOB}, s{sOB}, 2''')
    return sOA, sOB, sHB

def kv_dma(a, cfg, sOA, sOB, part, flags=''):
    sT0, sT1, sB = 47, 48, 52
    seg0 = 4 if part == 'own' else 0
    R = R_WS if part == 'own' else 56
    a(f'''s_lshl_b32 s{sT0}, s{S_J}, 2
    s_add_u32 s{sT0}, s{sT0}, s{S_W}
    s_add_u32 s{sT0}, s{sT0}, {seg0}
    s_sub_u32 s{sT0}, s{sT0}, 4
    s_lshl_b32 s{sT0}, s{sT0}, 10
    v_lshl_add_u32 v{T0}, v{V_LANE}, 4, s{sT0}
    s_add_u32 s{sB}, s{S_W}, {seg0}
    s_lshl_b32 s{sB}, s{sB}, 10''')
    for m, (ob, lb, pitch) in enumerate(((80, L_K, 8192), (160, L_V, VP))):
        for p in range(3):
            src = sOB if p == 2 else sOA
            a(f'''s_add_u32 s{sT0}, s{src}, {ob + (p if p < 2 else 0)}
            s_lshl_b32 s{sT0}, s{sT0}, 15
            s_add_u32 m0, s{sB}, {lb + p*pitch}
            s_nop 0
            buffer_load_dwordx4 v{T0}, s[{R}:{R+3}], s{sT0} offen {flags} lds''')

def q_load(a, sUnit, sOA, sOB, sHB, d1, d2, flags=''):
    sT0, sT1 = 47, 48
    a(f'''s_lshl_b32 s{sT0}, s{S_J}, 3
    s_add_u32 s{sT0}, s{sT0}, s{sUnit}
    s_lshl_b32 s{sT0}, s{sT0}, 9
    v_add_u32 v{T0}, s{sT0}, v{vQo}
    s_lshl_b32 s{sT1}, s{sOA}, 15
    buffer_load_dwordx4 {vr(d1, 4)}, v{T0}, s[{R_WS}:{R_WS+3}], s{sT1} offen {flags}
    v_and_b32 v{T1}, 0x7fff, v{T0}
    s_lshl_b32 s{sT1}, s{sOB}, 15
    s_lshl_b32 s{sT0}, s{sHB}, 3
    s_add_u32 s{sT1}, s{sT1}, s{sT0}
    buffer_load_dwordx2 {vr(d2, 2)}, v{T1}, s[{R_WS}:{R_WS+3}], s{sT1} offen {flags}''')

def attn_consts(a, sHB):
    sT0 = 47
    a(f'''v_and_b32 v{T0}, 31, v{V_LANE}
    v_lshrrev_b32 v{T1}, 5, v{V_LANE}
    v_lshlrev_b32 v{T2}, 4, v{T0}
    v_lshl_add_u32 v{vKa}, v{T1}, 13, v{T2}
    s_lshl_b32 s{sT0}, s{sHB}, 3
    s_add_u32 s{sT0}, s{sT0}, {L_K + 16384}
    v_add_u32 v{vKb}, s{sT0}, v{T2}
    v_lshl_add_u32 v{vQo}, v{T1}, 15, v{T2}''')
    a(f'v_lshlrev_b32 v{T2}, 2, v{T1}\nv_sub_u32 v{T2}, v{T0}, v{T2}')
    for r in range(16):
        a(f'v_cmp_le_i32 s[{SMASK+2*r}:{SMASK+2*r+1}], {(r & 3) + 8*(r >> 2)}, v{T2}')
    a(f'v_mov_b32 v{T2}, 0xffff\nv_mov_b32 v{T3}, 0xffff0000')
    for x in range(8):
        a(f'''v_cndmask_b32 v{MP+x}, 0, v{T2}, s[{SMASK+4*x}:{SMASK+4*x+1}]
        v_cndmask_b32 v{vM}, 0, v{T3}, s[{SMASK+4*x+2}:{SMASK+4*x+3}]
        v_or_b32 v{MP+x}, v{MP+x}, v{vM}''')
    a(f'v_sub_u32 v{T2}, 1, v{T1}\nv_mul_u32_u24 v{T2}, 0x3f80, v{T2}')
    for s in KF: a(f'v_mov_b32 v{s+6}, v{T2}\nv_mov_b32 v{s+7}, 0')
    a(f'''v_and_b32 v{T2}, 3, v{V_LANE}
    v_lshrrev_b32 v{T3}, 1, v{T2}
    v_mul_u32_u24 v{T3}, {VP}, v{T3}
    v_and_b32 v{vV}, 1, v{T2}
    v_lshl_add_u32 v{T3}, v{vV}, 3, v{T3}
    s_lshl_b32 s{sT0}, s{sHB}, 3
    s_add_u32 s{sT0}, s{sT0}, {2*VP}
    v_mov_b32 v{vV}, {3*VP}
    v_mov_b32 v{vM}, s{sT0}
    v_cmp_eq_u32 vcc, 0, v{T2}
    v_and_b32 v{T2}, 16, v{V_LANE}
    s_nop 0
    v_cndmask_b32 v{vV}, v{vV}, v{vM}, vcc
    v_cmp_eq_u32 vcc, 0, v{T2}
    v_bfe_u32 v{T2}, v{V_LANE}, 2, 2
    v_lshl_add_u32 v{T2}, v{T1}, 2, v{T2}
    v_cndmask_b32 v{vV}, v{vV}, v{T3}, vcc
    v_lshl_add_u32 v{vV}, v{T2}, 4, v{vV}
    v_add_u32 v{vV}, {L_V}, v{vV}''')

def ones_init(a):
    sT0 = 47
    a(f'''v_lshlrev_b32 v{T0}, 4, v0
    s_cmp_eq_u32 s{S_J}, 0
    s_cselect_b32 s{sT0}, 256, 0
    v_mov_b32 v{T2}, 0x3f80
    v_cmp_le_u32 vcc, s{sT0}, v0
    v_mov_b32 v{T3}, 0
    s_nop 0
    v_cndmask_b32 v{T2}, 0, v{T2}, vcc
    ds_write_b64 v{T0}, v[{T2}:{T3}] offset:{L_V + 3*VP}''')

def kreads(n_off, s):
    k = KF[s]
    return [f'ds_read_b128 {vr(k, 4)}, v{vKa} offset:{n_off}', f'ds_read_b64 {vr(k+4, 2)}, v{vKb} offset:{n_off}']
def vreads(n_off, s):
    v = VF[s]
    return [f'ds_read_b64_tr_b16 {vr(v+2*u, 2)}, v{vV} offset:{n_off + 128*u}' for u in range(4)]
def qk(sb, s):
    k = KF[s]
    return [f'v_mfma_f32_32x32x16_bf16 {vr(sb, 16)}, {vr(k, 4)}, {vr(Q1, 4)}, 0',
            f'v_mfma_f32_32x32x16_bf16 {vr(sb, 16)}, {vr(k+4, 4)}, {vr(Q2, 4)}, {vr(sb, 16)}']
def pv(s, p, first=False):
    v = VF[s]
    return [f'v_mfma_f32_32x32x16_bf16 {vr(OA, 16)}, {vr(v, 4)}, {vr(p, 4)}, {"0" if first else vr(OA, 16)}',
            f'v_mfma_f32_32x32x16_bf16 {vr(OA, 16)}, {vr(v+4, 4)}, {vr(p+4, 4)}, {vr(OA, 16)}']

def attn_unit(a, cfg, sUnit, sOA, sOB, sHB, halo_wait=None):
    sT0, sT1 = 47, 48
    off = lambda n: (7 - n)*512
    E = lambda sb, i: f'v_exp_f32 v{sb+i}, v{sb+i}'
    C = lambda sb, x, p=PP: f'v_cvt_pk_bf16_f32 v{p+x}, v{sb+2*x}, v{sb+2*x+1}'
    for l in kreads(off(0), 0) + kreads(off(1), 1) + vreads(off(0), 0): a(l)
    a('s_waitcnt lgkmcnt(6)')
    for l in qk(SB[0], 0): a(l)
    for l in kreads(0, 2): a(l)
    a('s_nop 7\ns_nop 1')
    S = SB[0]
    a(f'v_max3_f32 v{T0}, v{S}, v{S+1}, v{S+2}\nv_max3_f32 v{T1}, v{S+3}, v{S+4}, v{S+5}')
    a(f'v_max3_f32 v{T2}, v{S+6}, v{S+7}, v{S+8}\nv_max3_f32 v{T3}, v{S+9}, v{S+10}, v{S+11}')
    a(f'v_max3_f32 v{T0}, v{T0}, v{S+12}, v{S+13}\nv_max3_f32 v{T1}, v{T1}, v{S+14}, v{S+15}')
    a(f'v_max3_f32 v{T0}, v{T0}, v{T2}, v{T3}\nv_max_f32 v{T0}, v{T0}, v{T1}\nv_mov_b32 v{T1}, v{T0}\ns_nop 1')
    a(f'v_permlane32_swap_b32 v{T0}, v{T1}\nv_max_f32 v{T0}, v{T0}, v{T1}')
    a(f'v_sub_f32 v{T0}, {f2u(-BIAS)}, v{T0}\nv_cvt_pk_bf16_f32 v{Q2+2}, v{T0}, 0\nv_lshlrev_b32 v{vM}, 16, v{Q2+2}')
    for n in range(7):
        S = SB[n & 1]; SN = SB[(n + 1) & 1]
        QK = qk(SN, (n + 1) & 1)
        PVc = pv(n & 1, PP, first=(n == 0))
        vr_ = vreads(off(n + 1) if n < 6 else 8*512, (n + 1) & 1)
        kr_ = kreads(off(n + 2) if n < 5 else 8*512, n & 1) if n < 6 else []
        if n == 0:
            for i in range(8): a(f'v_add_f32 v{S+i}, v{vM}, v{S+i}')
            a('s_waitcnt lgkmcnt(0)')
        else:
            a(pv((n - 1) & 1, PP)[1])
        for l in vr_[:2]: a(l)
        for i in range(4): a(E(S, i))
        a(C(S, 0))
        a(QK[0])
        for l in vr_[2:]: a(l)
        for i in range(4, 8): a(E(S, i))
        a(C(S, 1))
        a(QK[1])
        for l in kr_: a(l)
        if n == 0:
            for i in range(8, 16): a(f'v_add_f32 v{S+i}, v{vM}, v{S+i}')
        a(C(S, 2)); a(C(S, 3))
        for i in range(8, 12): a(E(S, i))
        a(PVc[0])
        if n == 4:
            a(E(S, 12)); a(E(S, 13)); a(C(S, 4)); a(C(S, 5)); a(E(S, 14)); a(E(S, 15))
            a(qk(SB[2], 2)[0]); a(C(S, 6)); a(C(S, 7))
        elif n == 5:
            a(E(S, 12)); a(E(S, 13)); a(C(S, 4)); a(C(S, 5)); a(E(S, 14)); a(E(S, 15))
            a(qk(SB[2], 2)[1]); a(C(S, 6)); a(C(S, 7))
        else:
            for i in range(12, 16): a(E(S, i))
            for x in range(4, 8): a(C(S, x))
        a('s_waitcnt lgkmcnt(0)\ns_nop 0')
    S = SB[1]; F = SB[2]
    a(pv(0, PP)[1])
    for l in vreads(0, 0): a(l)
    for r in range(16): a(f'v_cndmask_b32 v{S+r}, v{F+r}, v{S+r}, s[{SMASK+2*r}:{SMASK+2*r+1}]')
    for i in range(8): a(E(S, i))
    for x in range(4): a(C(S, x, PF))
    for x in range(4): a(f'v_and_b32 v{PP+x}, v{MP+x}, v{PF+x}')
    for x in range(4): a(f'v_xor_b32 v{PF+x}, v{PP+x}, v{PF+x}')
    a(pv(1, PP)[0])
    for i in range(8, 12): a(E(S, i))
    a('s_waitcnt lgkmcnt(0)')
    a(pv(0, PF)[0])
    for i in range(12, 16): a(E(S, i))
    for x in range(4, 8): a(C(S, x, PF))
    for x in range(4, 8): a(f'v_and_b32 v{PP+x}, v{MP+x}, v{PF+x}')
    for x in range(4, 8): a(f'v_xor_b32 v{PF+x}, v{PP+x}, v{PF+x}')
    a(pv(1, PP)[1]); a('s_nop 0'); a(pv(0, PF)[1])

def attn_check_store(a, cfg, sUnit, sOA, sOB, sHB, lfall):
    sT0, sT1 = 47, 48
    lret = a.label('L_aret')
    otf = cfg.get('o_st', '')
    a(f's_nop 7\ns_nop 3')
    a(f'{lret}:')
    O = OA
    a(f'''v_mov_b32 v{T0}, v{O+8}
    v_mov_b32 v{T1}, v{O+8}
    v_add_f32 v{T2}, |v{O}|, |v{O+1}|
    v_add_f32 v{T3}, |v{O+2}|, |v{O+3}|
    v_permlane32_swap_b32 v{T0}, v{T1}''')
    for r in range(4, 12, 2): a(f'v_add_f32 v{T2}, v{T2}, |v{O+r}|\nv_add_f32 v{T3}, v{T3}, |v{O+r+1}|')
    a(f'''v_rcp_f32 v{T0}, v{T1}
    v_add_f32 v{T2}, v{T2}, v{T3}
    v_cmp_nle_f32 vcc, {f2u(2.0**-100)}, v{T1}
    s_mov_b64 s[54:55], vcc
    v_cmp_nge_f32 vcc, {f2u(2.0**120)}, v{T2}
    s_or_b64 vcc, vcc, s[54:55]
    s_andn2_b64 vcc, vcc, s[96:97]
    s_cbranch_vccnz {lfall}''')
    for r in range(12): a(f'v_mul_f32 v{O+r}, v{T0}, v{O+r}')
    for x in range(6): a(f'v_cvt_pk_bf16_f32 v{PP+x}, v{O+2*x}, v{O+2*x+1}')
    a(f'''s_lshl_b32 s{sT0}, s{S_J}, 3
    s_add_u32 s{sT0}, s{sT0}, s{sUnit}
    s_lshl_b32 s{sT0}, s{sT0}, 9
    v_add_u32 v{T2}, s{sT0}, v{vQo}
    s_lshl_b32 s{sT1}, s{sOA}, 15
    s_add_u32 s{sT1}, s{sT1}, {WS_O}
    v_permlane32_swap_b32 v{PP}, v{PP+2}
    v_permlane32_swap_b32 v{PP+1}, v{PP+3}
    buffer_store_dwordx4 {vr(PP, 4)}, v{T2}, s[{R_WS}:{R_WS+3}], s{sT1} offen {otf}
    s_lshl_b32 s{sT1}, s{sOB}, 15
    s_lshl_b32 s{sT0}, s{sHB}, 3
    s_add_u32 s{sT1}, s{sT1}, s{sT0}
    s_add_u32 s{sT1}, s{sT1}, {WS_O}
    s_mov_b32 exec_hi, 0
    buffer_store_dwordx2 {vr(PP+4, 2)}, v{T2}, s[{R_WS}:{R_WS+3}], s{sT1} offen {otf}
    s_mov_b32 exec_hi, -1''')
    return lret

def attn_fallback(a, cfg, lfall, lret):
    sN, sP, sLo = 53, 58, 59
    vA1, vA2, vA3, vD, vMx = 170, 171, 172, 173, 174
    S = SB[0]
    lp, lb, l2, ld = a.label('L_fp'), a.label('L_fb'), a.label('L_f2'), a.label('L_fd')
    a('; @reset'); a(f'{lfall}:')
    a(f'''s_mov_b64 s[96:97], -1
    v_mov_b32 v{Q2+2}, 0
    v_mov_b32 v{vMx}, 0xff800000
    s_mov_b32 s{sP}, 0
    s_sub_u32 s{sLo}, 8, s{cfg['sUnit']}
    s_cmp_eq_u32 s{S_J}, 0
    s_cselect_b32 s{sLo}, s{sLo}, 0''')
    for r in range(16): a(f'v_mov_b32 v{OA+r}, 0')
    a(f'''{lp}:
    s_mov_b32 s{sN}, s{sLo}
    {lb}:
    s_lshl_b32 s47, s{sN}, 9
    v_add_u32 v{vA1}, s47, v{vKa}
    v_add_u32 v{vA2}, s47, v{vKb}
    v_add_u32 v{vA3}, s47, v{vV}
    ds_read_b128 {vr(KF[0], 4)}, v{vA1}
    ds_read_b64 {vr(KF[0]+4, 2)}, v{vA2}''')
    for u in range(4): a(f'ds_read_b64_tr_b16 {vr(VF[0]+2*u, 2)}, v{vA3} offset:{128*u}')
    a(f'''s_sub_u32 s47, 8, s{sN}
    s_lshl_b32 s47, s47, 5
    v_and_b32 v{T0}, 31, v{V_LANE}
    v_lshrrev_b32 v{T1}, 5, v{V_LANE}
    v_lshlrev_b32 v{T1}, 2, v{T1}
    v_sub_u32 v{T0}, v{T0}, v{T1}
    v_add_u32 v{vD}, s47, v{T0}
    v_mov_b32 v{T1}, 0xff800000
    s_waitcnt lgkmcnt(0)''')
    for l in qk(S, 0): a(l)
    a('s_nop 7\ns_nop 7')
    for r in range(16):
        a(f'''v_subrev_u32 v{T0}, {(r & 3) + 8*(r >> 2)}, v{vD}
        v_cmp_gt_u32 vcc, 0x100, v{T0}
        s_nop 1
        v_cndmask_b32 v{S+r}, v{T1}, v{S+r}, vcc''')
    a(f's_cmp_lg_u32 s{sP}, 0\ns_cbranch_scc1 {l2}')
    for r in range(16): a(f'v_max_f32 v{vMx}, v{vMx}, v{S+r}')
    a(f's_branch {ld}\n{l2}:')
    for r in range(16): a(f'v_sub_f32 v{S+r}, v{S+r}, v{vMx}')
    for r in range(16): a(f'v_exp_f32 v{S+r}, v{S+r}')
    a('s_nop 0')
    for x in range(8): a(f'v_cvt_pk_bf16_f32 v{PP+x}, v{S+2*x}, v{S+2*x+1}')
    a('s_nop 1')
    for l in pv(0, PP): a(l)
    a(f'''s_nop 7
    s_nop 7
    {ld}:
    s_add_u32 s{sN}, s{sN}, 1
    s_cmp_le_u32 s{sN}, 8
    s_cbranch_scc1 {lb}
    v_mov_b32 v{T1}, v{vMx}
    s_nop 1
    v_permlane32_swap_b32 v{vMx}, v{T1}
    v_max_f32 v{vMx}, v{vMx}, v{T1}
    s_add_u32 s{sP}, s{sP}, 1
    s_cmp_lt_u32 s{sP}, 2
    s_cbranch_scc1 {lp}
    s_branch {lret}''')

def attn_run(a, cfg, sOA, sOB, sHB, sUnit, sCnt):
    lloop, lfall, ldone = a.label('L_au'), a.label('L_afall'), a.label('L_adone')
    cfg = dict(cfg); cfg['sUnit'] = sUnit
    a(f'{lloop}:')
    a(f'''s_waitcnt vmcnt(0)
    s_mov_b64 s[96:97], 0
    s_lshl_b32 s47, s{sUnit}, 9''')
    for x in range(4): a(f'v_mov_b32 v{Q1+x}, v{QN1+x}')
    a(f'''v_add_u32 v{vKa}, s47, v{vKa}
    v_add_u32 v{vKb}, s47, v{vKb}
    v_add_u32 v{vV}, s47, v{vV}
    v_mov_b32 v{Q2}, v{QN2}
    v_mov_b32 v{Q2+1}, v{QN2+1}
    v_mov_b32 v{Q2+2}, 0
    v_mov_b32 v{Q2+3}, 0
    s_mov_b32 exec_lo, 0
    v_mov_b32 v{Q2}, 0
    v_mov_b32 v{Q2+1}, 0
    s_mov_b32 exec_lo, -1''')
    a(f's_sub_u32 s53, 7, s{sUnit}')
    q_load(a, 53, sOA, sOB, sHB, QN1, QN2, cfg.get('q_ld', ''))
    attn_unit(a, cfg, sUnit, sOA, sOB, sHB)
    lret = attn_check_store(a, cfg, sUnit, sOA, sOB, sHB, lfall)
    a(f'''s_lshl_b32 s47, s{sUnit}, 9
    v_subrev_u32 v{vKa}, s47, v{vKa}
    v_subrev_u32 v{vKb}, s47, v{vKb}
    v_subrev_u32 v{vV}, s47, v{vV}
    s_sub_u32 s{sUnit}, 7, s{sUnit}
    s_sub_u32 s{sCnt}, s{sCnt}, 1
    s_cmp_lg_u32 s{sCnt}, 0
    s_cbranch_scc1 {lloop}
    s_branch {ldone}''')
    attn_fallback(a, cfg, lfall, lret)
    a('; @reset'); a(f'{ldone}:')

def y2_assign(a, sCL, sCT, lno):
    sT0 = 47
    a(f'''s_mul_i32 s{sT0}, s{S_IDX}, 52
    s_lshr_b32 s{sT0}, s{sT0}, 8
    s_mul_i32 s{sCT}, s{sT0}, 5
    s_sub_u32 s{sCT}, s{S_IDX}, s{sCT}
    s_lshl_b32 s{sCL}, s{sT0}, 3
    s_add_u32 s{sCL}, s{sCL}, s{S_J}
    s_cmp_gt_u32 s{sCL}, 32
    s_cbranch_scc1 {lno}''')

def k2_body(a, cfg, lend):
    import y2
    l_att, l_noy, l_y2 = a.label('L_att'), a.label('L_noy'), a.label('L_y2')
    sCL, sCT, sUnit, sCnt, sHasY = 98, 99, 100, 101, 57
    a('s_waitcnt lgkmcnt(0)')
    srd(a, R_WS, S_WS, WS_END)
    sOA, sOB, sHB = attn_setup(a, cfg)
    ones_init(a)
    a(f'''v_mov_b32 v{T0}, 0
    v_mov_b32 v{T1}, 0
    ds_write_b64 v{T0}, v[{T0}:{T1}] offset:{L_SYNC}''')
    a(f's_mov_b32 s{sCnt}, 1')
    y2_assign(a, sCL, sCT, l_noy)
    a(f'''s_mov_b32 s{sCnt}, 2
    s_cmp_ge_u32 s{S_W}, 4
    s_cbranch_scc1 {l_y2}
    {l_noy}:''')
    l_nold = a.label('L_nold')
    a(f'''s_sub_u32 s{sUnit}, 11, s{S_W}
    s_cmp_ge_u32 s{S_W}, 4
    s_cselect_b32 s{sUnit}, s{sUnit}, s{S_W}
    s_cbranch_scc1 {l_nold}
    s_mov_b32 s56, s{S_WS}
    s_mov_b32 s57, s{S_WS+1}
    s_cmp_eq_u32 s{S_J}, 0
    s_cselect_b32 s58, 0, {WS_END}
    s_mov_b32 s59, 0x20000''')
    kv_dma(a, cfg, sOA, sOB, 'own'); kv_dma(a, cfg, sOA, sOB, 'halo')
    a(f'{l_nold}:')
    attn_consts(a, sHB)
    q_load(a, sUnit, sOA, sOB, sHB, QN1, QN2)
    a('s_waitcnt vmcnt(2) lgkmcnt(0)\ns_barrier')
    stamp2(a, 1, cfg)
    attn_run(a, cfg, sOA, sOB, sHB, sUnit, sCnt)
    if cfg.get('stamps'):
        stamp2(a, 2, cfg); a('s_waitcnt vmcnt(0)'); stamp2(a, 3, cfg); stamp2_fin(a, cfg)
    a(f's_branch {lend}')
    a('; @reset'); a(f'{l_y2}:')
    y2.y2_body(a, cfg, lend, sCL, sCT)

def stamp2(a, n, cfg):
    if cfg.get('stamps'):
        a(f's_memrealtime s[62:63]\ns_waitcnt lgkmcnt(0)\nv_mov_b32 v{200+n}, s62')
def stamp2_fin(a, cfg):
    a('s_nop 1')
    for n in range(1, 8):
        if n <= 3: a(f'v_readfirstlane_b32 s{60+2*n}, v{200+n}')
        else: a(f's_mov_b32 s{60+2*n}, 0')
    a(f's_branch {cfg["lstamp"]}')
```

```python
from asmlib import *
from k1 import *

LA, LB, LX = 0, 81920, 102400
XP = 336
LDS = LX + 2*64*XP

def wo_dma(a, cfg, la, lb, waves=8, w0=0, sW=S_W):
    sT0, sT1, sM = 47, 48, 49
    vA, vB, t0, t1, t2 = 2, 3, 4, 5, 6
    assert waves in (4, 8)
    a(f'''s_and_b32 s{sT0}, s{S_IDX}, 7
    s_mul_i32 s{sT0}, s{sT0}, 160
    s_sub_u32 s{sM}, s{sW}, {w0}
    s_mul_i32 s{sT1}, s{sM}, {8*1280}
    s_add_u32 s{sT1}, s{sT1}, s{sT0}
    v_lshrrev_b32 v{t0}, 3, v{V_LANE}
    v_mul_u32_u24 v{t0}, 1280, v{t0}
    v_add_u32 v{t0}, s{sT1}, v{t0}
    v_bfe_u32 v{t1}, v{V_LANE}, 4, 1
    s_and_b32 s{sT1}, s{sM}, 1
    s_lshl_b32 s{sT1}, s{sT1}, 1
    v_or_b32 v{t1}, s{sT1}, v{t1}
    v_lshlrev_b32 v{t1}, 1, v{t1}
    v_and_b32 v{t2}, 7, v{V_LANE}
    v_xor_b32 v{t1}, v{t1}, v{t2}
    v_lshl_add_u32 v{vA}, v{t1}, 4, v{t0}
    v_lshrrev_b32 v{t0}, 1, v{V_LANE}
    v_bfe_u32 v{t1}, v{V_LANE}, 4, 1
    v_lshlrev_b32 v{t1}, 2, v{t1}
    v_xor_b32 v{t0}, v{t0}, v{t1}
    v_mul_u32_u24 v{t0}, 1280, v{t0}
    v_and_b32 v{t1}, 1, v{V_LANE}
    v_lshl_add_u32 v{t0}, v{t1}, 4, v{t0}
    s_mul_i32 s{sT1}, s{sM}, {32*1280}
    s_add_u32 s{sT1}, s{sT1}, s{sT0}
    s_add_u32 s{sT1}, s{sT1}, 128
    v_add_u32 v{vB}, s{sT1}, v{t0}
    s_lshl_b32 s{sM}, s{sM}, 10''')
    srd(a, R_B, S_WO, 640*1280)
    nA, nB = 80//waves, -(-20//waves)
    ib = 0
    for i in range(nA):
        a(f's_add_u32 m0, s{sM}, {la + i*waves*1024}\ns_mov_b32 s{sT0}, {i*waves*8*1280}')
        a(f'buffer_load_dwordx4 v{vA}, s[{R_B}:{R_B+3}], s{sT0} offen lds')
        if (i % 4 == 0) and ib < nB:
            l = a.label('L_wb')
            if (ib + 1)*waves > 20: a(f's_cmp_ge_u32 s{sM}, {(20 - ib*waves)*1024}\ns_cbranch_scc1 {l}')
            a(f's_add_u32 m0, s{sM}, {lb + ib*waves*1024}\ns_mov_b32 s{sT0}, {ib*waves*32*1280}')
            a(f'buffer_load_dwordx4 v{vB}, s[{R_B}:{R_B+3}], s{sT0} offen lds\n{l}:')
            ib += 1
    assert ib == nB

WF = 16
OF = 196
ACC = 236
vA4, vB2, vOa = 2, 6, 8
def wo_addr(a, la, lb):
    sT0, sKH = 47, 50
    t0, t1, t2, t3 = 9, 10, 11, 12
    a(f'''s_lshr_b32 s{sKH}, s{S_W}, 2
    v_lshrrev_b32 v{t0}, 4, v{V_LANE}
    v_bfe_u32 v{t1}, v{V_LANE}, 2, 2
    v_lshl_add_u32 v{t2}, v{t0}, 3, v{t1}
    s_mul_i32 s{sT0}, s{sKH}, 320
    v_add_u32 v{t2}, s{sT0}, v{t2}
    v_and_b32 v{t3}, 3, v{V_LANE}
    v_lshlrev_b32 v{t3}, 3, v{t3}
    v_and_b32 v{t0}, 1, v{t0}
    v_lshrrev_b32 v{t1}, 1, v{t1}
    v_lshl_add_u32 v{t1}, v{t0}, 1, v{t1}
    v_lshl_add_u32 v{vOa}, v{t2}, 7, v{t3}
    v_add_u32 v{vOa}, {la}, v{vOa}''')
    for j in range(4): a(f'v_xor_b32 v{vA4+j}, {j}, v{t1}\nv_lshl_add_u32 v{vA4+j}, v{vA4+j}, 5, v{vOa}')
    a(f'''v_lshl_add_u32 v{t2}, v{t2}, 5, v{t3}
    v_add_u32 v{t2}, {lb}, v{t2}
    v_lshl_add_u32 v{vB2}, v{t0}, 7, v{t2}
    v_xor_b32 v{t0}, 1, v{t0}
    v_lshl_add_u32 v{vB2+1}, v{t0}, 7, v{t2}''')
def wreads(ks, base):
    L = []
    for j in range(5):
        for u in range(2):
            if j < 4: L.append(f'ds_read_b64_tr_b16 {vr(base+4*j+2*u, 2)}, v{vA4+j} offset:{ks*4096 + u*512}')
            else: L.append(f'ds_read_b64_tr_b16 {vr(base+16+2*u, 2)}, v{vB2+u} offset:{ks*1024}')
    return L

def o_addr(a):
    sT0, sT1, sKH = 47, 48, 50
    t0, t1 = 9, 10
    a(f'''s_lshl_b32 s{sT0}, s{S_J}, 2
    s_lshr_b32 s{sT1}, s{S_IDX}, 3
    s_add_u32 s{sT0}, s{sT0}, s{sT1}
    s_lshl_b32 s{sT0}, s{sT0}, 2
    s_and_b32 s{sT1}, s{S_W}, 3
    s_add_u32 s{sT0}, s{sT0}, s{sT1}
    s_lshl_b32 s{sT0}, s{sT0}, 8
    s_mul_i32 s{sT1}, s{sKH}, {40*PL}
    s_add_u32 s{sT0}, s{sT0}, s{sT1}
    v_and_b32 v{t0}, 15, v{V_LANE}
    v_lshl_add_u32 v{t0}, v{t0}, 4, s{sT0}
    v_lshrrev_b32 v{t1}, 4, v{V_LANE}
    v_lshl_add_u32 v{vOa}, v{t1}, 15, v{t0}''')
def o_loads(a, cfg):
    for ks in range(10):
        a(f's_mov_b32 s47, {WS_O + 4*ks*PL}')
        a(f'buffer_load_dwordx4 {vr(OF+4*ks, 4)}, v{vOa}, s[{R_WS}:{R_WS+3}], s47 offen {cfg.get("o_ld", "")}')

def op_compute(a, cfg, lx):
    sT0, sT1, sKH = 47, 48, 50
    for ks in range(10):
        a(f's_waitcnt vmcnt({9-ks})' + (' lgkmcnt(0)' if ks in (0, 9) else ''))
        base = WF + 20*(ks % 9)
        for j in range(5):
            a(f'v_mfma_f32_16x16x32_bf16 {vr(ACC+4*j, 4)}, {vr(base+4*j, 4)}, {vr(OF+4*ks, 4)}, {"0" if ks == 0 else vr(ACC+4*j, 4)}')
        if ks == 1:
            for l in wreads(9, WF): a(l)
    t0, t1, t2, t3 = 9, 10, 11, 12
    a(f'''s_and_b32 s{sT0}, s{S_W}, 3
    s_lshl_b32 s{sT0}, s{sT0}, 4
    s_lshl_b32 s{sT1}, s{sKH}, 6
    s_add_u32 s{sT0}, s{sT0}, s{sT1}
    s_mul_i32 s{sT0}, s{sT0}, {XP}
    s_add_u32 s{sT0}, s{sT0}, {lx}
    v_and_b32 v{t0}, 15, v{V_LANE}
    v_mul_u32_u24 v{t0}, {XP}, v{t0}
    v_lshrrev_b32 v{t1}, 4, v{V_LANE}
    v_lshl_add_u32 v{t0}, v{t1}, 4, v{t0}
    v_add_u32 v{t0}, s{sT0}, v{t0}''')
    for j in range(5): a(f'ds_write_b128 v{t0}, {vr(ACC+4*j, 4)} offset:{64*j}')
    srd(a, R_OUT, S_OUT, 2048*2560)
    a(f'''s_lshl_b32 s{sT0}, s{S_J}, 2
    s_lshr_b32 s{sT1}, s{S_IDX}, 3
    s_add_u32 s{sT0}, s{sT0}, s{sT1}
    s_mul_i32 s{sT0}, s{sT0}, {64*2560}
    s_and_b32 s{sT1}, s{S_IDX}, 7
    s_mul_i32 s{sT1}, s{sT1}, 160
    s_add_u32 s{sT0}, s{sT0}, s{sT1}''')
    for rnd in range(2):
        vr_, vo = 16 + 2*rnd, 17 + 2*rnd
        a(f'''v_add_u32 v{t0}, {512*rnd}, v0
        v_mul_u32_u24 v{t1}, 6554, v{t0}
        v_lshrrev_b32 v{t1}, 16, v{t1}
        v_mul_u32_u24 v{t2}, 10, v{t1}
        v_sub_u32 v{t2}, v{t0}, v{t2}
        v_mul_u32_u24 v{vr_}, {XP}, v{t1}
        v_lshl_add_u32 v{vr_}, v{t2}, 5, v{vr_}
        v_add_u32 v{vr_}, {lx}, v{vr_}
        v_mul_u32_u24 v{vo}, 2560, v{t1}
        v_lshl_add_u32 v{vo}, v{t2}, 4, v{vo}
        v_add_u32 v{vo}, s{sT0}, v{vo}''')
    a('s_waitcnt lgkmcnt(0)\ns_barrier')
    stamp(a, 3, cfg)
    lf = a.label('L_ofin')
    for rnd in range(2):
        vr_, vo = 16 + 2*rnd, 17 + 2*rnd
        b = 24 + 16*rnd
        if rnd: a(f's_cmp_ge_u32 s{S_W}, 2\ns_cbranch_scc1 {lf}')
        for n, off in enumerate((0, 16, 64*XP, 64*XP + 16)): a(f'ds_read_b128 {vr(b+4*n, 4)}, v{vr_} offset:{off}')
        a('s_waitcnt lgkmcnt(0)')
        for i in range(8): a(f'v_add_f32 v{b+i}, v{b+i}, v{b+8+i}')
        for i in range(4): a(f'v_cvt_pk_bf16_f32 v{b+8+i}, v{b+2*i}, v{b+2*i+1}')
        a(f'buffer_store_dwordx4 {vr(b+8, 4)}, v{vo}, s[{R_OUT}:{R_OUT+3}], 0 offen {cfg.get("out_st", "")}')
    a(f'{lf}:')

def k3_body(a, cfg, lend):
    a('s_waitcnt lgkmcnt(0)')
    srd(a, R_WS, S_WS, WS_END)
    wo_dma(a, cfg, LA, LB)
    wo_addr(a, LA, LB)
    o_addr(a)
    a('s_waitcnt vmcnt(0)\ns_barrier')
    stamp(a, 1, cfg)
    o_loads(a, cfg)
    for ks in range(9):
        for l in wreads(ks, WF + 20*ks): a(l)
    stamp(a, 2, cfg)
    op_compute(a, cfg, LX)
    if cfg.get('stamps'):
        a('s_waitcnt vmcnt(0)'); stamp(a, 4, cfg)
        a(f's_branch {cfg["lstamp"]}')
```

```python
from asmlib import *
from k1 import *
import k2
from k2 import L_Y, L_SYNC, lds_arrive, lds_wait

R_C, R_S = 28, 32

def y2_body(a, cfg, lend, sCL, sCT, first_barrier=True):
    sT0, sT1, sY, sSG, sDH, sM, sT2 = 47, 48, 49, 50, 51, 52, 53
    vG, vG4, vTa, vTb, vTH, vRa, vRH, vZ = 2, 3, 4, 5, 6, 8, 12, 7
    t0, t1, t2, t3 = 14, 15, 16, 17
    ER, EI = 24, 40
    GX = 56
    ACC = 136
    TF = 200
    gf = cfg.get('g_ld', ''); yf = cfg.get('y_st', '')
    a(f'''s_sub_u32 s{sY}, s{S_W}, 4
    s_and_b32 s{sSG}, s{sY}, 1
    s_lshr_b32 s{sDH}, s{sY}, 1
    s_mul_i32 s{sM}, s{sY}, 24576
    s_add_u32 s{sM}, s{sM}, {L_Y}''')
    srd(a, R_C, S_HRE, 640*1280); srd(a, R_S, S_HIM, 640*1280); srd(a, R_OUT, S_OUT, 2048*2560)
    a(f'''v_and_b32 v{t0}, 0x13, v{V_LANE}
    v_bfe_u32 v{t1}, v{V_LANE}, 2, 1
    v_lshl_add_u32 v{t0}, v{t1}, 3, v{t0}
    v_bfe_u32 v{t1}, v{V_LANE}, 3, 1
    v_lshl_add_u32 v{t0}, v{t1}, 2, v{t0}
    v_lshrrev_b32 v{t1}, 5, v{V_LANE}
    v_mul_u32_u24 v{t2}, 10240, v{t1}
    v_lshl_add_u32 v{t0}, v{t0}, 4, v{t2}
    s_and_b32 s{sT0}, s{sCL}, 31
    s_mul_i32 s{sT0}, s{sT0}, 81920
    s_mul_i32 s{sT1}, s{sSG}, 5120
    s_add_u32 s{sT0}, s{sT0}, s{sT1}
    s_mul_i32 s{sT1}, s{sDH}, {192*16}
    s_add_u32 s{sT1}, s{sT1}, s{sT0}
    v_add_u32 v{vG}, s{sT1}, v{t0}
    s_mul_i32 s{sT1}, s{sDH}, {32*16}
    s_add_u32 s{sT1}, s{sT1}, s{sT0}
    s_add_u32 s{sT1}, s{sT1}, {128*16}
    v_add_u32 v{vG4}, s{sT1}, v{t0}''')
    if cfg.get('g_wait'): cfg['g_wait'](a)
    for lam in range(5):
        for ks in range(4):
            a(f's_mov_b32 s{sT0}, {WS_G + ks*20480}')
            a(f'buffer_load_dwordx4 {vr(GX + 16*lam + 4*ks, 4)}, v{vG if lam < 4 else vG4}, s[{R_WS}:{R_WS+3}], s{sT0} offen offset:{lam*512 if lam < 4 else 0} {gf}')
    a(f'''s_lshl_b32 s{sT0}, s{sCT}, 7
    s_add_u32 s{sT0}, s{sT0}, s{sSG}
    s_mul_i32 s{sT0}, s{sT0}, 1280
    s_mul_i32 s{sT1}, s{sDH}, 384
    s_add_u32 s{sT1}, s{sT1}, s{sT0}
    v_lshrrev_b32 v{t0}, 3, v{V_LANE}
    v_mul_u32_u24 v{t0}, 2560, v{t0}
    v_add_u32 v{t0}, s{sT1}, v{t0}
    v_lshrrev_b32 v{t2}, 4, v{V_LANE}
    v_and_b32 v{vTa}, 7, v{V_LANE}
    v_xor_b32 v{vTa}, v{vTa}, v{t2}
    v_xor_b32 v{vTb}, 4, v{vTa}
    v_lshl_add_u32 v{vTa}, v{vTa}, 4, v{t0}
    v_lshl_add_u32 v{vTb}, v{vTb}, 4, v{t0}
    s_lshl_b32 s{sT1}, s{sDH}, 6
    s_add_u32 s{sT1}, s{sT1}, s{sT0}
    s_add_u32 s{sT1}, s{sT1}, 256
    v_lshrrev_b32 v{t0}, 2, v{V_LANE}
    v_mul_u32_u24 v{t0}, 2560, v{t0}
    v_add_u32 v{t0}, s{sT1}, v{t0}
    v_and_b32 v{vTH}, 3, v{V_LANE}
    v_xor_b32 v{vTH}, v{vTH}, v{t2}
    v_lshl_add_u32 v{vTH}, v{vTH}, 4, v{t0}''')
    def tdma(c):
        slot = c % 3
        for i in range(8):
            a(f's_add_u32 m0, s{sM}, {slot*8192 + i*1024}')
            if c < 4:
                R = R_S if c & 1 else R_C
                a(f's_mov_b32 s{sT0}, {i*8*2560 + (c >> 1)*128}')
                a(f'buffer_load_dwordx4 v{vTb if i & 1 else vTa}, s[{R}:{R+3}], s{sT0} offen lds')
            else:
                R = R_S if i >= 4 else R_C
                a(f's_mov_b32 s{sT0}, {(i & 3)*16*2560}')
                a(f'buffer_load_dwordx4 v{vTH}, s[{R}:{R+3}], s{sT0} offen lds')
    for c in range(3): tdma(c)
    a(f'''v_and_b32 v{t0}, 31, v{V_LANE}
    v_bfe_u32 v{t2}, v{V_LANE}, 1, 3
    v_xor_b32 v{t2}, v{t2}, v{t1}
    v_lshl_add_u32 v{t3}, v{t0}, 7, s{sM}''')
    for kk in range(4): a(f'v_xor_b32 v{vZ}, {2*kk}, v{t2}\nv_lshl_add_u32 v{vRa+kk}, v{vZ}, 4, v{t3}')
    a(f'''v_bfe_u32 v{t2}, v{V_LANE}, 2, 2
    v_xor_b32 v{t2}, v{t2}, v{t1}
    v_lshl_add_u32 v{t3}, v{t0}, 6, s{sM}''')
    for kk in range(2): a(f'v_xor_b32 v{vZ}, {2*kk}, v{t2}\nv_lshl_add_u32 v{vRH+kk}, v{vZ}, 4, v{t3}')
    va, vb, vg, vt, vang = 18, 19, 20, 21, 22
    a(f'''v_lshl_add_u32 v{t0}, v{t0}, 6, s{sCL}
    v_cvt_f32_u32 v{vt}, v{t0}
    v_mul_f32 v{vt}, {f2u(1/2048)}, v{vt}
    v_lshlrev_b32 v{t2}, 2, v{t1}
    v_cvt_f32_u32 v{t2}, v{t2}
    v_mul_f32 v{vang}, v{vt}, v{t2}
    s_cmp_eq_u32 s{sCL}, 32
    s_cselect_b32 s{sT0}, 0, 1.0
    s_cselect_b32 s{sT1}, 1.0, 0
    v_mov_b32 v{va}, s{sT0}
    v_mov_b32 v{vg}, s{sT1}
    s_and_b32 s{sT0}, s{sCL}, 31
    s_cmp_eq_u32 s{sT0}, 0
    s_cselect_b32 s{sT0}, 0, 1.0
    v_mov_b32 v{vb}, s{sT0}''')
    lgen, ldn = a.label('L_egen'), a.label('L_edone')
    a(f's_cbranch_scc0 {lgen}')
    for ks in range(4):
        for jp in range(4):
            a(f'''v_mov_b32 v{t0}, {f2u(float(8*ks + jp))}
            v_fma_f32 v{t0}, v{vt}, v{t0}, v{vang}
            v_cos_f32 v{t2}, v{t0}
            v_sin_f32 v{t3}, v{t0}
            v_mul_f32 v{t0}, v{va}, v{t2}
            v_mul_f32 v{t2}, v{vg}, v{t2}
            v_cvt_pk_bf16_f32 v{ER+4*ks+jp}, v{t0}, v{t2}
            v_mul_f32 v{t0}, v{va}, v{t3}
            v_mul_f32 v{t2}, v{vg}, v{t3}
            v_cvt_pk_bf16_f32 v{EI+4*ks+jp}, -v{t0}, -v{t2}''')
    a(f's_branch {ldn}\n{lgen}:')
    for ks in range(4):
        for jp in range(4):
            a(f'''v_mov_b32 v{t0}, {f2u(float(8*ks + jp))}
            v_fma_f32 v{t0}, v{vt}, v{t0}, v{vang}
            v_cos_f32 v{t2}, v{t0}
            v_sin_f32 v{t3}, v{t0}
            s_nop 0
            v_cvt_pk_bf16_f32 v{ER+4*ks+jp}, v{t2}, v{t3}
            v_cvt_pk_bf16_f32 v{EI+4*ks+jp}, -v{t3}, v{t2}''')
    a(f'{ldn}:')
    if first_barrier: a('s_waitcnt lgkmcnt(0)\ns_barrier')
    stamp(a, 4, cfg, True)
    def s3(lam):
        acc = ACC + 32*(lam & 1)
        L = []
        for ks in range(4):
            g = vr(GX + 16*lam + 4*ks, 4)
            L.append(f'v_mfma_f32_32x32x16_bf16 {vr(acc, 16)}, {g}, {vr(ER+4*ks, 4)}, {"0" if ks == 0 else vr(acc, 16)}')
            L.append(f'v_mfma_f32_32x32x16_bf16 {vr(acc+16, 16)}, {g}, {vr(EI+4*ks, 4)}, {"0" if ks == 0 else vr(acc+16, 16)}')
        return L
    def cv(lam):
        acc = ACC + 32*(lam & 1)
        return [f'v_cvt_pk_bf16_f32 v{GX + 16*lam + x}, v{acc+2*x}, v{acc+2*x+1}' for x in range(16)]
    for lam in range(6):
        if lam < 5: a(f's_waitcnt vmcnt({24 + 4*(4 - lam)})')
        M = s3(lam) if lam < 5 else []
        Cv = cv(lam - 1) if lam else []
        if lam == 5: a('s_nop 7\ns_nop 3')
        for i, mm in enumerate(M):
            a(mm)
            if Cv and i == 0: a('s_nop 7\ns_nop 1')
            if Cv and i >= 0:
                for l in Cv[2*i:2*i+2]: a(l)
        if not M:
            for l in Cv: a(l)
    stamp(a, 5, cfg, True)
    for c in range(5):
        a(f's_waitcnt vmcnt({16 if c < 3 else (8 if c == 3 else 0)})')
        slot = c % 3
        R, M = [], []
        for n in range(8):
            m2 = n & 1
            if c < 4:
                kk = n >> 1; mat = c & 1
                R.append(f'ds_read_b128 {vr(TF+4*n, 4)}, v{vRa+kk} offset:{slot*8192 + m2*4096}')
                xb = GX + 16*(2*(c >> 1) + (kk >> 1)) + 8*mat + 4*(kk & 1)
                first = (c < 2 and kk == 0)
            else:
                kk = (n >> 1) & 1; mat = n >> 2
                R.append(f'ds_read_b128 {vr(TF+4*n, 4)}, v{vRH+kk} offset:{slot*8192 + mat*4096 + m2*2048}')
                xb = GX + 64 + 8*mat + 4*kk
                first = False
            acc = ACC + 32*mat + 16*m2
            M.append(f'v_mfma_f32_32x32x16_bf16 {vr(acc, 16)}, {vr(TF+4*n, 4)}, {vr(xb, 4)}, {"0" if first else vr(acc, 16)}')
        for l in R: a(l)
        for n in range(8):
            a(f's_waitcnt lgkmcnt({7-n})'); a(M[n])
        if c < 2: tdma(c + 3)
    stamp(a, 6, cfg, True)
    a(f'''v_and_b32 v{t0}, 31, v{V_LANE}
    v_mul_u32_u24 v{t2}, 528, v{t1}
    v_lshl_add_u32 v{t0}, v{t0}, 4, v{t2}
    v_add_u32 v{t0}, s{sM}, v{t0}
    v_mov_b32 v{vZ}, 0
    s_nop 7''')
    W = GX
    for m2 in range(2):
        for g in range(4):
            for i in range(4):
                p, q = ACC + 16*m2 + 4*g + i, ACC + 32 + 16*m2 + 4*g + i
                w = W + 8*(4*m2 + g)
                a(f'v_sub_f32 v{w+i}, v{p}, v{q}\nv_add_f32 v{w+4+i}, v{p}, v{q}')
            a(f'ds_write_b128 v{t0}, {vr(w, 4)} offset:{(8*m2 + 2*g)*528}')
            a(f'ds_write_b128 v{t0}, {vr(w+4, 4)} offset:{8448 + (8*m2 + 2*g)*528}')
    vRd, vOut = vG, vG4
    a(f'''v_and_b32 v{t0}, 15, v{V_LANE}
    v_lshrrev_b32 v{t2}, 4, v{V_LANE}
    s_lshl_b32 s{sT0}, s{sSG}, 4
    v_add_u32 v{t2}, s{sT0}, v{t2}
    v_mul_u32_u24 v{vRd}, 528, v{t0}
    v_lshl_add_u32 v{vRd}, v{t2}, 4, v{vRd}
    s_mul_i32 s{sT0}, s{sDH}, 8448
    s_add_u32 s{sT0}, s{sT0}, {L_Y}
    v_add_u32 v{vRd}, s{sT0}, v{vRd}
    v_lshl_add_u32 v{t2}, v{t2}, 6, s{sCL}
    v_sub_u32 v{t3}, 2048, v{t2}
    s_mov_b32 s{sT2}, {(-256*2560) & 0xffffffff}
    s_cmp_eq_u32 s{sDH}, 0
    s_cselect_b64 vcc, -1, 0
    s_cselect_b32 s{sT2}, {256*2560}, s{sT2}
    v_cndmask_b32 v{t2}, v{t3}, v{t2}, vcc
    v_mul_u32_u24 v{t2}, 2560, v{t2}
    s_lshl_b32 s{sT0}, s{sCT}, 8
    s_add_u32 s{sT0}, s{sT0}, 1280
    v_lshl_add_u32 v{t2}, v{t0}, 4, v{t2}
    v_add_u32 v{vOut}, s{sT0}, v{t2}
    s_waitcnt lgkmcnt(0)''')
    lds_arrive(a, vZ, t0, L_SYNC)
    lskip = a.label('L_yskip')
    a(f'''s_and_b32 s{sT0}, s{sCL}, 31
    s_cmp_eq_u32 s{sT0}, 0
    s_cselect_b32 s{sT0}, s{sDH}, 0
    s_cmp_lg_u32 s{sT0}, 0
    s_cbranch_scc1 {lskip}''')
    lds_wait(a, vZ, t0, L_SYNC, 4, sT0)
    for it in range(4):
        for y in range(4):
            a(f'ds_read_b128 {vr(ACC + 16*it + 4*y, 4)}, v{vRd} offset:{(y*24576 + it*64) if y < 2 else ((y-2)*24576 + it*64)}' if y < 2 else
              f'ds_read_b128 {vr(ACC + 16*it + 4*y, 4)}, v{t3} offset:{(y-2)*24576 + it*64}')
            if it == 0 and y == 0: a(f'v_add_u32 v{t3}, 49152, v{vRd}')
    for it in range(4):
        b = ACC + 16*it
        a(f's_waitcnt lgkmcnt({min(15, 12 - 4*it)})')
        for i in range(4): a(f'v_add_f32 v{b+i}, v{b+i}, v{b+8+i}\nv_add_f32 v{b+4+i}, v{b+4+i}, v{b+12+i}')
        for i in range(4): a(f'v_cvt_pk_bf16_f32 v{TF+4*it+i}, v{b+i}, v{b+4+i}')
        a(f'buffer_store_dwordx4 {vr(TF+4*it, 4)}, v{vOut}, s[{R_OUT}:{R_OUT+3}], 0 offen {yf}')
        if it < 3: a(f'v_add_u32 v{vOut}, s{sT2}, v{vOut}')
    a(f'{lskip}:')
    if cfg.get('stamps'):
        a('s_waitcnt vmcnt(0)'); stamp(a, 7, cfg)
        a(f's_branch {cfg["lstamp"]}')
    a(f's_branch {lend}')
```

```python
import sys, json
from asmlib import *
from k1 import *
try:
    import k2
except ImportError: k2 = None
try:
    import k3
except ImportError: k3 = None

HEADER = open('cdna_kernels/' + NAME + '.s.ref').read().split('; Override launch')[0]
WS_STAMP = 0xF00000

def desc(name, vg=256, sg=102):
    return f'''.amdhsa_kernel {name}
  .amdhsa_next_free_vgpr {vg}
  .amdhsa_next_free_sgpr {sg}
  .amdhsa_accum_offset {min(256, (vg+3)//4*4)}
  .amdhsa_group_segment_fixed_size 0
  .amdhsa_kernarg_size 88
  .amdhsa_user_sgpr_count 2
  .amdhsa_user_sgpr_kernarg_segment_ptr 1
  .amdhsa_system_sgpr_workgroup_id_x 1
.end_amdhsa_kernel
'''

def stamp_tail(a, cfg, kidx, lend):
    if not cfg.get('stamps'): return
    a('; @reset'); a(f'{cfg["lstamp"]}:')
    a('s_waitcnt lgkmcnt(0)')
    srd(a, R_WS, S_WS, WS_END)
    for n in range(8): a(f'v_mov_b32 v{8+n}, s{60+2*n}')
    a(f'''s_lshl_b32 s60, s2, 3
    s_add_u32 s60, s60, s{S_W}
    s_lshl_b32 s60, s60, 5
    s_add_u32 s60, s60, {WS_STAMP + kidx*0x10000}
    v_mov_b32 v2, s60
    s_mov_b64 exec, 1
    buffer_store_dwordx4 v[8:11], v2, s[{R_WS}:{R_WS+3}], 0 offen
    buffer_store_dwordx4 v[12:15], v2, s[{R_WS}:{R_WS+3}], 0 offen offset:16''')

def kernel(name, body, cfg, kidx):
    a = Asm()
    a.uid = 1000*kidx
    lend = a.label('L_end')
    cfg = dict(cfg); cfg['lstamp'] = a.label('L_stamp')
    if cfg.get('stamps'):
        for n in range(8): a(f's_mov_b64 s[{60+2*n}:{61+2*n}], 0') if n else None
        stamp(a, 0, cfg)
    prologue(a, lend)
    body(a, cfg, lend)
    stamp_tail(a, cfg, kidx, lend)
    a(f'{lend}:\ns_endpgm')
    errs = check(a.lines, name)
    return f'.globl {name}\n.p2align 8\n.type {name},@function\n{name}:\n' + a.text(), errs

def build3(cfg, which=(1, 2, 3)):
    ks = []
    if 1 in which: ks.append(('k1_kernel', k1_body, cfg.get('NS', 4)*32768, 1))
    if 2 in which: ks.append(('k2_kernel', k2.k2_body, k2.LDS, 2))
    if 3 in which: ks.append(('k3_kernel', k3.k3_body, k3.LDS, 3))
    out = HEADER
    for n, b, lds, i in ks: out += f'; @launch kernel={n} grid=(256,1,1) block=(512,1,1) lds={lds}\n'
    out += '.amdgcn_target "amdgcn-amd-amdhsa--gfx950"\n.text\n'
    nerr = 0
    for n, b, lds, i in ks:
        t, e = kernel(n, b, cfg, i); out += t; nerr += len(e)
    out += '.section .rodata,"a"\n'
    for n, b, lds, i in ks: out += '.p2align 6\n' + desc(n)
    return out, nerr

if __name__ == '__main__':
    path = sys.argv[1]
    cfg = json.loads(sys.argv[2]) if len(sys.argv) > 2 else {}
    which = tuple(cfg.get('which', (1, 2, 3)))
    t, nerr = build3(cfg, which)
    open(path, 'w').write(t)
    print('wrote', path, len(t), 'bytes; checker problems:', nerr)
```
